```python
import torch

def _softmax(x, axis=-1):
    return torch.softmax(x, dim=axis)
def _gelu(x):
    return torch.nn.functional.gelu(x, approximate="tanh")
def _silu(x):
    return torch.nn.functional.silu(x)
def _sigmoid(x):
    return torch.sigmoid(x)
def _layernorm(x, axis=-1, eps=1e-5):
    m = x.mean(dim=axis, keepdim=True)
    v = x.var(dim=axis, keepdim=True, unbiased=False)
    return (x - m) / torch.sqrt(v + eps)
def _scatter_add(tgt, idx, src, axis=0):
    return tgt.clone().index_add_(axis, idx, src)
def _segment_sum(src, seg, n):
    out = torch.zeros((n,) + src.shape[1:], dtype=src.dtype)
    return out.index_add_(0, seg, src)
def _pad(x, pw):
    flat = tuple(v for pair in reversed(pw) for v in pair)
    return torch.nn.functional.pad(x, flat)

kernel_name = 'gated_mix__gqa_block_cached__dense_activation_mish__decode'

def setup_inputs():

    _w = (lambda a: (lambda t: t.to(torch.bfloat16) if t.is_floating_point() else t)(torch.as_tensor(a)))
    def _A_setup():
        B, Sq, D = 2, 1, 640
        Hq, Hkv, Sk, Dh = 32, 32, 4096, 192
        assert Hq % Hkv == 0, (Hq, Hkv)
        return {
            "x": _w((lambda *s: torch.randn(*s, dtype=torch.bfloat16) * 0.05)(B, Sq, D)),
            "k_cache": _w((lambda *s: torch.randn(*s, dtype=torch.bfloat16) * 6.4)(B, Hkv, Sk, Dh)),
            "v_cache": _w((lambda *s: torch.randn(*s, dtype=torch.bfloat16) * 0.1)(B, Hkv, Sk, Dh)),
            "wq": _w((lambda *s: torch.randn(*s, dtype=torch.bfloat16) * 6.4)(D, Hq * Dh) * (D ** -0.5)),
            "wo": _w((lambda *s: torch.randn(*s, dtype=torch.bfloat16) * 0.1)(Hq * Dh, D) * ((Hq * Dh) ** -0.5)),
        }
    _A_in = _A_setup()

    def _B_setup():
        B, S, D, F = 2, 1, 640, 1536
        return {
            "x": _w((lambda *s: torch.randn(*s, dtype=torch.bfloat16) * 0.05)(B, S, D)),
            "w1": _w((lambda *s: torch.randn(*s, dtype=torch.bfloat16) * 3.2)(D, F) * (D ** -0.5)),
            "b1": _w((lambda *s: torch.randn(*s, dtype=torch.bfloat16) * 0.05)(F)),
            "w2": _w((lambda *s: torch.randn(*s, dtype=torch.bfloat16) * 0.05)(F, D) * (F ** -0.5)),
        }
    _B_in = _B_setup()

    return {
        "A_x": _A_in["x"],
        "A_k_cache": _A_in["k_cache"],
        "A_v_cache": _A_in["v_cache"],
        "A_wq": _A_in["wq"],
        "A_wo": _A_in["wo"],
        "B_x": _B_in["x"],
        "B_w1": _B_in["w1"],
        "B_b1": _B_in["b1"],
        "B_w2": _B_in["w2"],
        "gate_w": _w((lambda *s: torch.randn(*s, dtype=torch.bfloat16) * 0.05)(640) * 16.0),
    }

def reference(A_x, A_k_cache, A_v_cache, A_wq, A_wo, B_x, B_w1, B_b1, B_w2, gate_w):
    def _A_ref(x, k_cache, v_cache, wq, wo):
        B, Sq, D = x.shape
        Hq, Dh = 32, 192
        Hkv = k_cache.shape[1]
        rep = Hq // Hkv
        q = (lambda x, *d: x.permute(*d))((x @ wq).reshape(B, Sq, Hq, Dh), 0, 2, 1, 3)
        k = (lambda x, n, axis: torch.repeat_interleave(x, n, dim=axis))(k_cache, rep, axis=1)
        v = (lambda x, n, axis: torch.repeat_interleave(x, n, dim=axis))(v_cache, rep, axis=1)
        scores = torch.einsum("bhqd,bhkd->bhqk", q, k) * (Dh ** -0.5)
        p = _softmax(scores, axis=-1)
        o = torch.einsum("bhqk,bhkd->bhqd", p, v)
        return (lambda x, *d: x.permute(*d))(o, 0, 2, 1, 3).reshape(B, Sq, Hq * Dh) @ wo

    def _B_ref(x, w1, b1, w2):
        h = torch.einsum("bsd,df->bsf", x, w1) + b1
        sp = torch.log1p(torch.exp(-torch.abs(h))) + torch.where(h > 0, h, torch.zeros_like(h))
        act = h * torch.tanh(sp)
        return torch.einsum("bsf,fd->bsd", act, w2)

    x = A_x
    g = _sigmoid((x * gate_w).sum(-1, keepdims=True))
    a = _A_ref(x, A_k_cache, A_v_cache, A_wq, A_wo)
    b = _B_ref(x, B_w1, B_b1, B_w2)
    return g * a + (1 - g) * b
```

```python
import sys, json
KN = "gated_mix__gqa_block_cached__dense_activation_mish__decode"
HEADER = open("cdna_kernels/" + KN + ".s.ref").read().split("; Override launch")[0]

WS_QP = 0x10000
WS_ML = 0x20000
WS_BRD = 0x30000
WS_YA = 0x80000
WS_OP = 0x100000
WS_STAMP = 0x10000000
WS_SIZE = 402653184
TAGC = 0x9E3779B1

L_CTL = 0
L_MLL = 256
L_YB = 512
L_OIMG = 1280
L_RED = 2048
L_WT = 3072
L_QIMG = 4096
L_W2 = 8192
L_PART = 16384
L_WO = L_PART + 32768
L_SLAB = L_WO + 30720
L_TOTAL = L_SLAB + 40960
C_PROG, C_W, C_LOC, C_Q, C_RED, C_ML, C_WT, C_WO, C_PART, C_TRIG = 0, 4, 8, 12, 16, 20, 24, 28, 32, 64

LOG2E = 0x3fb8aa3b
SCALE = 0x3d93cd3a
LN2 = 0x3f317218
DPP = " row_mask:0xf bank_mask:0xf"

class Asm:
    def __init__(self): self.L = []
    def __call__(self, s): self.L.append("    " + s)
    def label(self, s): self.L.append(s + ":")
    def c(self, s): self.L.append("    ; " + s)
    def raw(self, s): self.L.append(s)

def gen(stamps=0, NR=42, DL=5, sched=((0, 3), (9, 5)), AD=3, W2D=2, sig=2, P=None,
        CP=(44, 56, 68, 80, 92, 104, 116, 128, 140, 152, 164, 174), dyn0=48, rdstep=4, Wmin=4, Wmax=7,
        WT=((0, 4), (4, 5), (22, 6), (29, 7)), loc=(6, (0, 0, 0, 1)), bflags="sc1",
        trig=184, WOD1=12, WOD2=32, wo_cut=99, WOE=1, wo_early=12, wt_step=170, olag=24, omask=1, opre=0, osl=4, pw=(7,),
        YC=8, WSEG=8, ysets=2, ygap=2, ydelay=20, sleep_bg=8, fastn=40, forceslow=0, maxspin=65536,
        mapping="xcd", early=None, BUDGET=6, crit=3, diag_fix=0, pollf="nt", dbg=0, G0N=8, tg=1, wgc=0, ipf=1, ipflags=''):
    a = Asm()
    DS = sched[0][1]
    if P is None: P = NR - DL
    a.raw(HEADER.rstrip("\n"))
    a.raw("; @launch grid=(256,1,1) block=(512,1,1) lds=%d" % L_TOTAL)
    a.raw('.amdgcn_target "amdgcn-amd-amdhsa--gfx950"')
    a.raw(".text"); a.raw(".globl %s_kernel" % KN); a.raw(".p2align 8"); a.raw(".type %s_kernel,@function" % KN)
    a.raw("%s_kernel:" % KN)
    sX, sK, sV, sWQ, sWO, sW1, sB1, sW2, sGW, sOUT, sDBG, sWS = 4, 6, 8, 10, 12, 16, 18, 20, 22, 24, 26, 28
    sWAVE, sXS, sI = 3, 30, 31
    SRD_A, SRD_B, SRD_WS, SRD_C = 32, 36, 40, 44
    sHP, sJ, sTAG, sA = 48, 49, 50, 51
    sT0, sT1, sT2, sT3, sOFF, sCNT = 52, 53, 54, 55, 56, 57
    sM0, sM1 = 58, 60
    sK1, sK2, sG0, sG1, sTAGX, sMODE, sW, sWL = 62, 63, 64, 65, 66, 67, 68, 69
    sST = 70
    sHB = 86
    sWG = 90
    srd = lambda r: "s[%d:%d]" % (r, r+3)
    vr = lambda r, n=1: "v%d" % r if n == 1 else "v[%d:%d]" % (r, r+n-1)
    mute = [False]
    def stamp(k, force=False):
        if stamps and (force or not mute[0]): a("s_memrealtime s[%d:%d]" % (sST+2*k, sST+2*k+1))
    def dump_stamps(vt=2):
        if not stamps: return
        a("s_mov_b64 exec, 1"); a("s_waitcnt lgkmcnt(0)")
        a("s_lshl_b32 s%d, s2, 3" % sT0); a("s_add_u32 s%d, s%d, s%d" % (sT0, sT0, sWAVE))
        a("s_lshl_b32 s%d, s%d, 6" % (sT0, sT0)); a("s_add_u32 s%d, s%d, %d" % (sT0, sT0, WS_STAMP))
        a("v_mov_b32 v%d, s%d" % (vt, sT0))
        for k in range(8):
            a("v_mov_b32 v%d, s%d" % (vt+2, sST+2*k)); a("v_mov_b32 v%d, s%d" % (vt+3, sST+2*k+1))
            a("buffer_store_dwordx2 v[%d:%d], v%d, %s, 0 offen offset:%d" % (vt+2, vt+3, vt, srd(SRD_WS), 8*k))
            a("s_nop 1")
        a("s_waitcnt vmcnt(0)")
    def end_wave():
        dump_stamps(); a("s_endpgm")
    def mk_srd(r, base, size):
        a("s_mov_b32 s%d, s%d" % (r, base)); a("s_mov_b32 s%d, s%d" % (r+1, base+1))
        a("s_mov_b32 s%d, %d" % (r+2, size)); a("s_mov_b32 s%d, 0x20000" % (r+3))
    uid = [0]
    def U(): uid[0] += 1; return uid[0]
    def check(tagregs, vbad, xregs=(), pad=True):
        a("v_xor_b32 v%d, s%d, v%d" % (vbad, sTAG, tagregs[0]))
        for r in tagregs[1:]: a("v_bitop3_b32 v%d, v%d, s%d, v%d bitop3:0xbe" % (vbad, r, sTAG, vbad))
        for r in xregs: a("v_bitop3_b32 v%d, v%d, s%d, v%d bitop3:0xbe" % (vbad, r, sTAGX, vbad))
        a("v_cmp_ne_u32 vcc, 0, v%d" % vbad)
        if pad: a("s_nop 4")
    def poll(loads, tagregs, vbad, sleep):
        u = U()
        a("s_mov_b32 s%d, %d" % (sCNT, maxspin))
        a.label("L_poll%d" % u)
        for l in loads: a(l)
        a("s_waitcnt vmcnt(0)")
        check(tagregs, vbad)
        a("s_cbranch_vccz L_pok%d" % u)
        a("s_sub_u32 s%d, s%d, 1" % (sCNT, sCNT)); a("s_cbranch_scc1 L_pok%d" % u)
        if sleep: a("s_sleep %d" % sleep)
        a("s_branch L_poll%d" % u)
        a.label("L_pok%d" % u)
    def by_mode(fn):
        u = U()
        a("s_cmp_eq_u32 s%d, 0" % sMODE); a("s_cbranch_scc0 L_bm%d" % u)
        fn(True); a("s_branch L_bme%d" % u)
        a.label("L_bm%d" % u); fn(False); a.label("L_bme%d" % u)
    def lds_wait(vaddr, vtmp, off, val, sleep, sdst=None):
        sd = sT0 if sdst is None else sdst
        u = U()
        a("s_mov_b32 s%d, %d" % (sCNT, maxspin*8))
        a.label("L_lw%d" % u)
        a("ds_read_b32 v%d, v%d offset:%d" % (vtmp, vaddr, off))
        a("s_waitcnt lgkmcnt(0)")
        a("v_readfirstlane_b32 s%d, v%d" % (sd, vtmp))
        a("s_cmp_ge_u32 s%d, %d" % (sd, val)); a("s_cbranch_scc1 L_lwok%d" % u)
        a("s_sub_u32 s%d, s%d, 1" % (sCNT, sCNT)); a("s_cbranch_scc1 L_lwok%d" % u)
        if sleep: a("s_sleep %d" % sleep)
        a("s_branch L_lw%d" % u)
        a.label("L_lwok%d" % u)
    def get_mode(vaddr, vtmp, sleep):
        lds_wait(vaddr, vtmp, C_Q, 1, sleep, sMODE)
        a("s_lshr_b32 s%d, s%d, 1" % (sMODE, sMODE)); a("s_xor_b32 s%d, s%d, 1" % (sMODE, sMODE))
    def signal(vaddr, vone, off):
        a("s_mov_b64 exec, 1"); a("ds_add_u32 v%d, v%d offset:%d" % (vaddr, vone, off)); a("s_mov_b64 exec, -1")
    def rnd(v): a("v_cvt_pk_bf16_f32 v%d, 0, v%d" % (v, v))
    def head_of(dst, t_sgpr=None, t=None):
        if t is not None:
            a("s_add_u32 s%d, s%d, %d" % (dst, sXS, sig*t)); a("s_and_b32 s%d, s%d, 7" % (dst, dst))
            if t: a("s_add_u32 s%d, s%d, %d" % (dst, dst, 8*t))
        else:
            a("s_mul_i32 s%d, s%d, %d" % (dst, t_sgpr, sig)); a("s_add_u32 s%d, s%d, s%d" % (dst, dst, sXS))
            a("s_and_b32 s%d, s%d, 7" % (dst, dst)); a("s_lshl3_add_u32 s%d, s%d, s%d" % (dst, t_sgpr, dst))
    def opos(dst, t0, t1):
        a("v_and_b32 v%d, 7, v0" % t0); a("v_lshrrev_b32 v%d, 3, v0" % t1); a("v_lshl_add_u32 v%d, v%d, 3, v%d" % (t0, t0, t1))
        a("v_and_b32 v%d, 35, v%d" % (dst, t0))
        a("v_and_b32 v%d, 12, v%d" % (t1, t0)); a("v_lshl_add_u32 v%d, v%d, 1, v%d" % (dst, t1, dst))
        a("v_and_b32 v%d, 16, v%d" % (t1, t0)); a("v_lshrrev_b32 v%d, 2, v%d" % (t1, t1)); a("v_add_u32 v%d, v%d, v%d" % (dst, dst, t1))
        a("v_lshlrev_b32 v%d, 2, v%d" % (dst, dst))

    a("s_cmp_ge_u32 s2, 256"); a("s_cbranch_scc1 L_end")
    if stamps:
        for k in range(1, 8): a("s_mov_b64 s[%d:%d], 0" % (sST+2*k, sST+2*k+1))
    stamp(0)
    if diag_fix: a("s_memrealtime s[98:99]")
    a("s_load_dwordx16 s[4:19], s[0:1], 0")
    a("s_load_dwordx8 s[20:27], s[0:1], 64")
    a("s_load_dwordx2 s[28:29], s[0:1], 96")
    a("v_lshrrev_b32 v1, 6, v0")
    a("v_and_b32 v0, 63, v0")
    a("v_readfirstlane_b32 s%d, v1" % sWAVE)
    if mapping == "xcd":
        a("s_and_b32 s%d, s2, 7" % sXS); a("s_lshr_b32 s%d, s2, 3" % sI)
    else:
        a("s_lshr_b32 s%d, s2, 5" % sXS); a("s_and_b32 s%d, s2, 31" % sI)
    a("s_lshr_b32 s%d, s%d, 3" % (sHP, sI)); a("s_and_b32 s%d, s%d, 7" % (sJ, sI))
    a("s_cmp_ge_u32 s%d, 4" % sWAVE); a("s_cbranch_scc1 L_aux")

    vOFF, vCA, vONE, vRK, vCL = 1, 2, 3, 4, 5
    vT = 6
    vPL, vPH = 14, 15
    vQ = 16; vSC = 28; vACC = 60; vRING = 84
    vL2E, vQA, vPA = 252, 253, 254
    assert vRING + 4*NR <= 252
    a("v_lshrrev_b32 v%d, 3, v0" % vT); a("v_mul_u32_u24 v%d, 384, v%d" % (vT, vT))
    a("v_and_b32 v%d, 7, v0" % vQA); a("v_lshlrev_b32 v%d, 4, v%d" % (vQA, vQA))
    if wgc:
        a("s_mul_i32 s%d, s%d, %d" % (sT0, sI, 4*wgc)); a("s_add_u32 s%d, s%d, s%d" % (sT0, sT0, sWAVE)); a("s_mul_i32 s%d, s%d, 3072" % (sT0, sT0))
    else:
        a("s_lshl2_add_u32 s%d, s%d, s%d" % (sT0, sI, sWAVE)); a("s_mul_i32 s%d, s%d, %d" % (sT0, sT0, 3072*tg))
    a("v_add3_u32 v%d, v%d, v%d, s%d" % (vOFF, vT, vQA, sT0))
    a("s_mul_i32 s%d, s%d, 1572864" % (sHB, sXS))
    a("s_mov_b32 s%d, s%d" % (sOFF, sHB))
    a("s_waitcnt lgkmcnt(0)")
    mk_srd(SRD_A, sK, 100663296)
    q = []
    def vm_wait(name):
        n = len(q) - 1 - q.index(name); assert n <= 63
        a("s_waitcnt vmcnt(%d)" % n)
    nxt = [0]; processed = [0]
    def next_off(i):
        tt = (i // 3) % 32; p_, k_ = divmod(tt, 4)
        a("s_add_u32 s%d, s%d, %d" % (sOFF, sHB + (p_ & 3), (p_ >> 2)*50331648 + (((k_//wgc)*128*wgc + (k_ % wgc)*4) if wgc else ((k_//tg)*128*tg + k_ % tg))*3072))
    def issue_next():
        i = nxt[0]; j = i % 3
        assert i - NR < processed[0], ("ring overflow", i, processed[0])
        r = vRING + 4*(i % NR)
        a("buffer_load_dwordx4 %s, v%d, %s, s%d offen offset:%d nt" % (vr(r, 4), vOFF, srd(SRD_A if i < 96 else SRD_B), sOFF, 128*j))
        if j == 2 and i + 1 < 192: next_off(i + 1)
        q.append("kv%d" % i); nxt[0] += 1
    for _ in range(DS): issue_next()
    assert DS < 12
    a("s_load_dword s%d, s[%d:%d], 0" % (sTAG, sWS, sWS+1))
    mk_srd(SRD_B, sV, 100663296)
    mk_srd(SRD_WS, sWS, WS_SIZE)
    for t in range(1, 4):
        head_of(sHB+t, t=t); a("s_mul_i32 s%d, s%d, 1572864" % (sHB+t, sHB+t))
    for i in range(32): a("v_mov_b32 v%d, 0" % (vSC+i))
    a("v_mov_b32 v%d, %d" % (vCA, L_CTL)); a("v_mov_b32 v%d, 1" % vONE); a("v_mov_b32 v%d, 0x%x" % (vL2E, LOG2E))
    a("s_lshl_b32 s%d, s%d, 10" % (sT0, sWAVE)); a("v_lshlrev_b32 v%d, 4, v0" % vPA); a("v_add_u32 v%d, s%d, v%d" % (vPA, sT0, vPA))
    a("s_mov_b32 s%d, 0" % sWL); a("s_mov_b32 s%d, %d" % (sW, DL))
    a("s_waitcnt lgkmcnt(0)")
    a("s_add_u32 s%d, s%d, 0x%x" % (sTAG, sTAG, TAGC))
    a("s_barrier")

    def q_read(p):
        for jj in range(3):
            a("ds_read_b128 %s, v%d offset:%d" % (vr(vQ+4*jj, 4), vQA, L_QIMG + (p >> 2)*2048 + (p & 3)*384 + 128*jj))
    def k_load(i):
        t, j = divmod(i, 3); r = vRING + 4*(i % NR); S = vSC + t
        if i % 12 == 0 and i: a("s_waitcnt lgkmcnt(0)")
        for u in range(4): a("v_dot2c_f32_bf16 v%d, v%d, v%d" % (S, r+u, vQ+4*j+u))
        if j == 2:
            if i % 12 == 11 and i < 95: q_read(i // 12 + 1)
            else: a("s_nop 2")
            a("v_add_f32_dpp v%d, v%d, v%d quad_perm:[1,0,3,2]" % (S, S, S) + DPP); a("s_nop 1")
            a("v_add_f32_dpp v%d, v%d, v%d quad_perm:[2,3,0,1]" % (S, S, S) + DPP); a("s_nop 1")
            a("v_add_f32_dpp v%d, v%d, v%d row_half_mirror" % (S, S, S) + DPP)
            rnd(S); a("v_mul_f32 v%d, 0x%x, v%d" % (S, SCALE, S)); rnd(S)
        processed[0] = i + 1
    def tred(op, B, dst):
        a("s_nop 1")
        for i in range(4): a("v_permlane32_swap_b32 v%d, v%d" % (B+i, B+i+4))
        for i in range(4): a("%s v%d, v%d, v%d" % (op, B+i, B+i, B+i+4))
        a("s_nop 1")
        for i in range(2): a("v_permlane16_swap_b32 v%d, v%d" % (B+i, B+i+2))
        for i in range(2): a("%s v%d, v%d, v%d" % (op, B+i, B+i, B+i+2))
        a("s_nop 1")
        a("%s_dpp v%d, v%d, v%d row_ror:8 row_mask:0xf bank_mask:0x3" % (op, dst, B, B))
        a("%s_dpp v%d, v%d, v%d row_ror:8 row_mask:0xf bank_mask:0xc" % (op, dst, B+1, B+1))
    vML = vQ + 8
    def sm_max():
        for p in range(8):
            a("v_max3_f32 v%d, v%d, v%d, v%d" % (vQ+p, vSC+4*p, vSC+4*p+1, vSC+4*p+2))
        for p in range(8): a("v_max_f32 v%d, v%d, v%d" % (vQ+p, vQ+p, vSC+4*p+3))
        tred("v_max_f32", vQ, vML)
        a("v_mul_f32 v%d, v%d, v%d" % (vML, vML, vL2E)); a("s_nop 0")
        for p in range(8): a("v_readlane_b32 s%d, v%d, %d" % (sWG+p, vML, 8*p))
        a("s_nop 1")
    def sm_exp(p):
        for t in range(4*p, 4*p+4): a("v_fma_f32 v%d, v%d, v%d, -s%d" % (vSC+t, vSC+t, vL2E, sWG+p))
        for t in range(4*p, 4*p+4): a("v_exp_f32 v%d, v%d" % (vSC+t, vSC+t))
        a("v_add_f32 v%d, v%d, v%d" % (vQ+p, vSC+4*p, vSC+4*p+1))
        a("v_add_f32 v%d, v%d, v%d" % (vQ+p, vQ+p, vSC+4*p+2)); a("v_add_f32 v%d, v%d, v%d" % (vQ+p, vQ+p, vSC+4*p+3))
    def sm_pub():
        tred("v_add_f32", vQ, vML+1)
        a("v_lshrrev_b32 v%d, 3, v0" % vT); a("s_lshl_b32 s%d, s%d, 3" % (sT0, sWAVE)); a("v_lshl_add_u32 v%d, v%d, 5, s%d" % (vT, vT, sT0))
        a("ds_write_b64 v%d, %s offset:%d" % (vT, vr(vML, 2), L_MLL))
        signal(vCA, vONE, C_ML)
        stamp(2)
    def v_load(i):
        t, j = divmod(i-96, 3); r = vRING + 4*(i % NR)
        if j == 0:
            a("v_cvt_pk_bf16_f32 v%d, v%d, 0" % (vPL, vSC+t)); a("v_cvt_pk_bf16_f32 v%d, 0, v%d" % (vPH, vSC+t))
        for u in range(4):
            for hl, pv in ((0, vPL), (1, vPH)):
                d = vACC+8*j+2*u+hl
                if t % 4 == 0: a("v_dot2_f32_bf16 v%d, v%d, v%d, 0" % (d, r+u, pv))
                else: a("v_dot2c_f32_bf16 v%d, v%d, v%d" % (d, r+u, pv))
        processed[0] = i + 1
    def red_a():
        a("s_nop 2")
        for j in range(3):
            for i in range(4): a("v_permlane32_swap_b32 v%d, v%d" % (vACC+8*j+i, vACC+8*j+i+4))
        for j in range(3):
            for i in range(4): a("v_add_f32 v%d, v%d, v%d" % (vACC+8*j+i, vACC+8*j+i, vACC+8*j+i+4))
    def red_b(p):
        for j in range(3):
            for i in range(2): a("v_permlane16_swap_b32 v%d, v%d" % (vACC+8*j+i, vACC+8*j+i+2))
        for j in range(3):
            for i in range(2): a("v_add_f32 v%d, v%d, v%d" % (vACC+8*j+i, vACC+8*j+i, vACC+8*j+i+2))
        for j in range(3):
            a("v_add_f32_dpp v%d, v%d, v%d row_ror:8 row_mask:0xf bank_mask:0x3" % (vT+j, vACC+8*j, vACC+8*j))
            a("v_add_f32_dpp v%d, v%d, v%d row_ror:8 row_mask:0xf bank_mask:0xc" % (vT+j, vACC+8*j+1, vACC+8*j+1))
        a("ds_write_b128 v%d, %s offset:%d" % (vPA, vr(vT, 4), L_PART + 4096*p))
        signal(vCA, vONE, C_PART + 4*p)
    vGA, vOA, vBA, vAA, vYA, vYB = vQ, vQ+1, vQ+2, vQ+3, vQ+4, vQ+6
    sGB, sYA = sG0, sG1
    def mfma_setup(sCT, t0):
        a("v_lshrrev_b32 v%d, 2, v0" % vBA); a("v_mul_u32_u24 v%d, 160, v%d" % (vBA, vBA)); a("v_and_b32 v%d, 3, v0" % t0)
        a("v_lshl_add_u32 v%d, v%d, 3, v%d" % (vBA, t0, vBA))
        a("s_lshl_b32 s%d, s%d, 5" % (sT1, sCT)); a("s_add_u32 s%d, s%d, %d" % (sT1, sT1, L_WO)); a("v_add_u32 v%d, s%d, v%d" % (vBA, sT1, vBA))
        a("v_and_b32 v%d, 1, v0" % vAA); a("v_mul_u32_u24 v%d, 384, v%d" % (vAA, vAA)); a("v_and_b32 v%d, 48, v0" % t0)
        a("v_add_u32 v%d, v%d, v%d" % (vAA, t0, vAA))
        lw = WSEG.bit_length() - 1
        a("s_mul_i32 s%d, s%d, 40960" % (sYA, sJ)); a("s_lshl_b32 s%d, s%d, 13" % (sT1, sCT)); a("s_add_u32 s%d, s%d, s%d" % (sYA, sYA, sT1))
        a("s_lshl3_add_u32 s%d, s%d, s%d" % (sT1, sHP, sXS)); a("s_lshl_b32 s%d, s%d, %d" % (sT1, sT1, 4+lw))
        a("s_add_u32 s%d, s%d, s%d" % (sYA, sYA, sT1)); a("s_add_u32 s%d, s%d, %d" % (sYA, sYA, WS_YA))
        a("v_lshrrev_b32 v%d, %d, v0" % (vYA, lw)); a("v_lshlrev_b32 v%d, %d, v%d" % (vYA, 9+lw, vYA))
        a("v_and_b32 v%d, %d, v0" % (t0, WSEG-1)); a("v_lshl_add_u32 v%d, v%d, 4, v%d" % (vYA, t0, vYA))
        a("v_and_b32 v%d, 15, v0" % (vYA+1)); a("s_lshl_b32 s%d, s%d, 7" % (sT1, sCT)); a("v_lshl_add_u32 v%d, v%d, 3, s%d" % (vYA+1, vYA+1, sT1))
    def get_q():
        get_mode(vCA, vT, 1)
        q_read(0)
        a("s_waitcnt lgkmcnt(0)")
        stamp(1)
    work = []
    for i in range(96): work.append((i, 1 if i % 3 != 2 else 3, (lambda i=i: k_load(i))))
    work.append((95, 6, sm_max))
    for p in range(8): work.append((95, 3, (lambda p=p: sm_exp(p))))
    work.append((95, 4, sm_pub))
    for i in range(96, 192):
        work.append((i, 2, (lambda i=i: v_load(i))))
        if i % 12 == 11 and i < 191:
            work.append((i, 4, red_a)); work.append((i, 4, (lambda p=(i-96)//12: red_b(p))))
        if i == wt_step: work.append((i, 5, (lambda: mfma_setup(sWAVE, vT))))
    wi = 0
    LP = list(range(dyn0, 186, loc[0])) if loc else []
    if early: mute[0] = True
    for i in range(192):
        dyn = CP and i >= dyn0
        if dyn and (i - dyn0) % rdstep == 0:
            a("s_waitcnt lgkmcnt(0)"); a("v_readfirstlane_b32 s%d, v%d" % (sW, vCL))
            if loc: a("s_add_u32 s%d, s%d, s%d" % (sW, sW, sWL))
        if CP and loc and (i - 1) in LP:
            a("s_waitcnt lgkmcnt(0)"); a("v_readfirstlane_b32 s%d, v%d" % (sT0, vRK))
            a("s_sub_u32 s%d, s%d, s%d" % (sW, sW, sWL))
            a("s_and_b32 s%d, s%d, 3" % (sT0, sT0)); a("s_lshl_b32 s%d, s%d, 3" % (sT0, sT0))
            a("s_mov_b32 s%d, 0x%x" % (sWL, sum((v & 0xff) << (8*k) for k, v in enumerate(loc[1]))))
            a("s_lshr_b32 s%d, s%d, s%d" % (sWL, sWL, sT0)); a("s_sext_i32_i8 s%d, s%d" % (sWL, sWL))
            a("s_add_u32 s%d, s%d, s%d" % (sW, sW, sWL))
        n = len(q) - 1 - q.index("kv%d" % i)
        d = [dd for st_, dd in sched if i >= st_][-1]
        if dyn:
            d = min(Wmax, n + 2)
            if nxt[0] < 192:
                u = U()
                lv = [w_ for w_ in range(Wmin, Wmax) if w_ - 1 < n]
                for w_ in reversed(lv):
                    a("s_cmp_gt_i32 s%d, %d" % (sW, w_)); a("s_cbranch_scc1 L_dw%d_%d" % (u, w_+1))
                for w_ in lv:
                    a("s_waitcnt vmcnt(%d)" % (w_ - 1)); a.label("L_dw%d_%d" % (u, w_+1))
        vm_wait("kv%d" % i)
        if early and i in early: stamp(1 + early.index(i), True)
        def fill():
            while nxt[0] < 192 and nxt[0] - 1 - i < d and nxt[0] - NR < processed[0]: issue_next()
        fill()
        if i == P: get_q()
        if CP and loc and i in LP:
            a("s_mov_b64 exec, 1"); a("ds_add_rtn_u32 v%d, v%d, v%d offset:%d" % (vRK, vCA, vONE, C_LOC)); a("s_mov_b64 exec, -1")
        if CP and i in CP: signal(vCA, vONE, C_PROG)
        if i == trig: signal(vCA, vONE, C_TRIG)
        if CP and i + 1 >= dyn0 and (i + 1 - dyn0) % rdstep == 0: a("ds_read_b32 v%d, v%d offset:%d" % (vCL, vCA, C_W))
        if i >= P:
            spent = 0
            while wi < len(work) and work[wi][0] <= i and (spent < BUDGET or i == 191):
                spent += work[wi][1]; work[wi][2](); wi += 1
            fill()
    assert wi == len(work) and nxt[0] == 192
    stamp(3)
    red_a(); red_b(7)
    stamp(4)
    FB = vRING + 64; FA = vRING + 96; FD = vACC
    a.label("L_mfma")
    lds_wait(vCA, vT, C_WO, 1, 0)
    a("ds_read_b64 %s, v%d offset:%d" % (vr(vYB, 2), vYA+1, L_YB))
    for t in range(6):
        a("ds_read_b64_tr_b16 %s, v%d offset:%d" % (vr(FB+4*t, 2), vBA, 5120*t))
        a("ds_read_b64_tr_b16 %s, v%d offset:%d" % (vr(FB+4*t+2, 2), vBA, 5120*t+2560))
    stamp(7)
    a("s_barrier")
    stamp(5)
    a("s_waitcnt lgkmcnt(8)")
    for t in range(6): a("ds_read_b128 %s, v%d offset:%d" % (vr(FA+4*t, 4), vAA, L_OIMG + 64*t))
    for t in range(6):
        a("s_waitcnt lgkmcnt(%d)" % (5-t))
        a("v_mfma_f32_16x16x32_bf16 %s, %s, %s, %s" % (vr(FD, 4), vr(FA+4*t, 4), vr(FB+4*t, 4), "0" if t == 0 else vr(FD, 4)))
    a("s_mov_b64 exec, 0xffff")
    a("s_nop 6")
    a("v_mov_b32 v%d, v%d" % (FD+2, vYB)); a("v_mov_b32 v%d, v%d" % (FD+3, vYB+1))
    a("buffer_store_dwordx4 %s, v%d, %s, s%d offen sc1" % (vr(FD, 4), vYA, srd(SRD_WS), sYA))
    stamp(6)
    end_wave()

    a.label("L_aux")
    mute[0] = False
    a("s_sub_u32 s%d, s%d, 4" % (sA, sWAVE))
    vXA, vB, vD, vY = 32, 56, 72, 80
    G = 96
    a("v_mov_b32 v%d, %d" % (vCA, L_CTL)); a("v_mov_b32 v%d, 1" % vONE)
    a("v_lshlrev_b32 v12, 2, v0"); a("v_mov_b32 v13, 0")
    a("v_cmp_eq_u32 vcc, 1, v0"); a("v_mov_b32 v14, %d" % DL); a("s_nop 0"); a("v_cndmask_b32 v14, v13, v14, vcc")
    a("ds_write_b32 v12, v14 offset:%d" % L_CTL)
    if ipf:
        a("s_getpc_b64 s[94:95]")
        a.label("L_pc")
        a("s_sub_u32 s94, s94, L_pc-%s_kernel" % KN); a("s_subb_u32 s95, s95, 0")
        a("s_lshl2_add_u32 s%d, s%d, s%d" % (sT0, sI, sA)); a("s_lshl_b32 s%d, s%d, 10" % (sT0, sT0))
        a("v_lshl_add_u32 v20, v0, 4, s%d" % sT0)
        a("v_mov_b32 v23, s95")
        a("v_add_co_u32 v22, vcc, s94, v20"); a("s_nop 1"); a("v_addc_co_u32 v23, vcc, 0, v23, vcc")
        a("s_mov_b32 s%d, L_end-%s_kernel-12" % (sT0, KN))
        a("v_cmp_gt_u32 vcc, s%d, v20" % sT0)
        a("s_and_saveexec_b64 s[92:93], vcc")
        a("s_cbranch_execz L_noipf")
        a("global_load_dwordx4 v[24:27], v[22:23], off %s" % ipflags)
        a.label("L_noipf")
        a("s_mov_b64 exec, -1")
    a("s_mul_i32 s%d, s%d, 43" % (sT0, sI)); a("s_lshr_b32 s%d, s%d, 8" % (sT0, sT0))
    a("s_mul_i32 s%d, s%d, 6" % (sT1, sT0)); a("s_sub_u32 s%d, s%d, s%d" % (sT1, sI, sT1))
    head_of(sT2, t_sgpr=sT0)
    a("s_cmp_ge_u32 s%d, 4" % sT0)
    a("s_cselect_b32 s%d, s%d, s%d" % (sT2, sXS, sT2))
    a("s_mov_b32 s%d, 12288" % sK1); a("s_cselect_b32 s%d, 3072, s%d" % (sK1, sK1))
    a("s_mul_i32 s%d, s%d, 384" % (sT2, sT2)); a("s_lshl_b32 s%d, s%d, 6" % (sT1, sT1)); a("s_add_u32 s%d, s%d, s%d" % (sG1, sT2, sT1))
    a("s_mul_i32 s%d, s%d, 160" % (sT2, sA)); a("s_mul_i32 s%d, s%d, s%d" % (sT2, sT2, sK1)); a("s_add_u32 s%d, s%d, s%d" % (sOFF, sG1, sT2))
    a("v_lshrrev_b32 v6, 2, v0"); a("v_and_b32 v7, 3, v0")
    a("v_lshrrev_b32 v8, 3, v0"); a("v_and_b32 v8, 2, v8")
    a("v_xor_b32 v9, v7, v8"); a("v_lshlrev_b32 v9, 4, v9")
    a("v_mul_lo_u32 v10, v6, s%d" % sK1); a("v_add_u32 v10, v10, v9")
    a("s_lshl_b32 s%d, s%d, 4" % (sK1, sK1))
    a("s_mul_i32 s%d, s%d, 10240" % (sK2, sA)); a("s_add_u32 s%d, s%d, %d" % (sK2, sK2, L_SLAB))
    a("v_and_b32 v11, 1, v0"); a("v_mul_u32_u24 v11, 1280, v11"); a("v_lshrrev_b32 v9, 4, v0"); a("v_lshl_add_u32 v11, v9, 3, v11")
    a("s_mul_i32 s%d, s%d, 320" % (sT1, sA))
    a("s_waitcnt lgkmcnt(0)")
    a("s_cmp_ge_u32 s%d, 4" % sT0)
    a("s_cselect_b32 s%d, s%d, s%d" % (SRD_A, sW1, sWQ)); a("s_cselect_b32 s%d, s%d, s%d" % (SRD_A+1, sW1+1, sWQ+1))
    a("s_mov_b32 s%d, 7864320" % (SRD_A+2)); a("s_cselect_b32 s%d, 1966080, s%d" % (SRD_A+2, SRD_A+2)); a("s_mov_b32 s%d, 0x20000" % (SRD_A+3))
    mk_srd(SRD_B, sX, 2560)
    mk_srd(SRD_WS, sWS, WS_SIZE)
    a("s_load_dword s%d, s[%d:%d], 0" % (sTAG, sWS, sWS+1))
    def slab(i):
        a("s_add_u32 m0, s%d, %d" % (sK2, 1024*i))
        if i: a("s_add_u32 s%d, s%d, s%d" % (sOFF, sOFF, sK1))
        else: a("s_nop 0")
        a("buffer_load_dwordx4 v10, %s, s%d offen nt lds" % (srd(SRD_A), sOFF))
    def tags():
        a("s_getreg_b32 s%d, hwreg(HW_REG_XCC_ID, 0, 4)" % sTAGX)
        a("v_lshlrev_b32 v12, 4, v0")
        a("s_waitcnt lgkmcnt(0)")
        a("s_add_u32 s%d, s%d, 0x%x" % (sTAG, sTAG, TAGC))
        a("s_add_u32 s%d, s%d, s%d" % (sTAGX, sTAGX, sTAG)); a("s_add_u32 s%d, s%d, 1" % (sTAGX, sTAGX))
        a("s_barrier")
    a("s_cmp_lt_u32 s%d, 30" % sI); a("s_cbranch_scc1 L_strip")
    tags()
    a("v_mov_b32 v%d, 0" % vY); a("v_mov_b32 v%d, 0" % (vY+1))
    a("s_cmp_eq_u32 s%d, 0" % sA); a("s_cbranch_scc1 L_qpub")
    a("s_branch L_roles")
    a.label("L_strip")
    for i in range(AD): slab(i)
    for t in range(10):
        a("buffer_load_dwordx2 %s, v11, %s, s%d offen offset:%d" % (vr(vXA+2*t, 2), srd(SRD_B), sT1, 32*t))
    tags()
    mk_srd(SRD_C, sB1, 3072)
    a("v_and_b32 v9, 31, v0"); a("v_lshlrev_b32 v9, 1, v9")
    a("buffer_load_ushort v30, v9, %s, s%d offen" % (srd(SRD_C), sG1))
    a("v_lshlrev_b32 v9, 3, v7"); a("v_lshl_add_u32 v9, v6, 6, v9"); a("v_add_u32 v9, s%d, v9" % sK2)
    a("v_lshl_add_u32 v16, v8, 4, v9")
    a("v_xor_b32 v8, 2, v8"); a("v_lshl_add_u32 v17, v8, 4, v9")
    a("s_mov_b32 s%d, 0" % sM0); a("s_mov_b32 s%d, -1" % (sM0+1))
    a("s_mov_b32 s%d, 0xffff0000" % sM1); a("s_mov_b32 s%d, 0xffff0000" % (sM1+1))
    for i in range(AD, 10):
        a("s_waitcnt vmcnt(%d)" % (AD-1 + (11 if i < 2*AD else 0))); slab(i)
    a("s_waitcnt vmcnt(0)")
    stamp(1)
    def brd(t):
        for ct in range(2):
            for e4 in range(2):
                a("ds_read_b64_tr_b16 %s, v%d offset:%d" % (vr(vB+8*(t & 1)+4*ct+2*e4, 2), 16+ct, 2048*t+1024*e4))
    brd(0)
    for t in range(5):
        if t < 4: brd(t+1)
        a("s_waitcnt lgkmcnt(%d)" % (4 if t < 4 else 0))
        for ct in range(2):
            a("v_mfma_f32_16x16x32_bf16 %s, %s, %s, %s" % (vr(vD+4*ct, 4), vr(vXA+4*t, 4), vr(vB+8*(t & 1)+4*ct, 4), "0" if t == 0 else vr(vD+4*ct, 4)))
    a("s_lshl_b32 s%d, s%d, 8" % (sT1, sA)); a("v_lshl_add_u32 v9, v0, 2, s%d" % sT1)
    a("s_nop 6")
    for ct in range(2): a("v_cndmask_b32 v%d, v%d, v%d, s[%d:%d]" % (vD+4*ct, vD+4*ct, vD+4*ct+1, sM0, sM0+1))
    a("v_cndmask_b32 v%d, v%d, v%d, s[%d:%d]" % (vD, vD, vD+4, sM1, sM1+1))
    a("ds_write_b32 v9, v%d offset:%d" % (vD, L_RED))
    signal(vCA, vONE, C_RED)
    a("s_cmp_eq_u32 s%d, 0" % sA); a("s_cbranch_scc0 L_roles")
    lds_wait(vCA, 13, C_RED, 4, 0, sT1)
    for w in range(1, 4): a("ds_read_b32 v%d, v9 offset:%d" % (vD+w, L_RED + 256*w))
    a("s_waitcnt lgkmcnt(0)")
    H = vD
    a("v_add_f32 v%d, v%d, v%d" % (H, H, H+1)); a("v_add_f32 v%d, v%d, v%d" % (H+2, H+2, H+3)); a("v_add_f32 v%d, v%d, v%d" % (H, H, H+2))
    a("s_cmp_lt_u32 s%d, 24" % sI); a("s_cbranch_scc1 L_nomish")
    E, Uv, Wv, Z = H+1, H+2, H+3, H+4
    a("s_mov_b32 s%d, 0x%x" % (sK1, LOG2E))
    rnd(H)
    a("v_lshlrev_b32 v30, 16, v30"); a("v_add_f32 v%d, v%d, v30" % (H, H)); rnd(H)
    a("v_mul_f32 v%d, -|v%d|, s%d" % (E, H, sK1)); a("v_exp_f32 v%d, v%d" % (E, E)); a("s_nop 0"); rnd(E)
    a("v_add_f32 v%d, 1.0, v%d" % (Uv, E)); a("v_log_f32 v%d, v%d" % (Uv, Uv))
    a("v_mov_b32 v%d, 0x3eaaaaab" % Wv); a("v_fmac_f32 v%d, 0xbe800000, v%d" % (Wv, E))
    a("v_mul_f32 v%d, 0x%x, v%d" % (Uv, LN2, Uv))
    a("v_fma_f32 v%d, v%d, v%d, -0.5" % (Wv, Wv, E)); a("v_fma_f32 v%d, v%d, v%d, 1.0" % (Wv, Wv, E)); a("v_mul_f32 v%d, v%d, v%d" % (Wv, Wv, E))
    a("v_cmp_gt_f32 vcc, 0x3d000000, v%d" % E); a("s_nop 1")
    a("v_cndmask_b32 v%d, v%d, v%d, vcc" % (Uv, Uv, Wv)); rnd(Uv)
    a("v_max_f32 v%d, 0, v%d" % (Wv, H)); a("v_add_f32 v%d, v%d, v%d" % (Uv, Uv, Wv)); rnd(Uv)
    a("v_mul_f32 v%d, 0xc038aa3b, v%d" % (E, Uv)); a("v_exp_f32 v%d, v%d" % (E, E))
    a("v_mul_f32 v%d, v%d, v%d" % (Z, Uv, Uv))
    a("v_add_f32 v%d, 1.0, v%d" % (Wv, E)); a("v_rcp_f32 v%d, v%d" % (Wv, Wv))
    a("v_sub_f32 v%d, 1.0, v%d" % (E, E)); a("v_mul_f32 v%d, v%d, v%d" % (E, E, Wv))
    a("v_mov_b32 v%d, 0xbeaaaaab" % Wv); a("v_fmac_f32 v%d, 0x3e088889, v%d" % (Wv, Z))
    a("v_fma_f32 v%d, v%d, v%d, 1.0" % (Wv, Wv, Z)); a("v_mul_f32 v%d, v%d, v%d" % (Wv, Wv, Uv))
    a("v_cmp_gt_f32 vcc, 0x3d800000, v%d" % Uv); a("s_nop 1")
    a("v_cndmask_b32 v%d, v%d, v%d, vcc" % (E, E, Wv)); rnd(E)
    a("v_mul_f32 v%d, v%d, v%d" % (H, H, E))
    a.label("L_nomish")
    a("s_nop 1")
    a("v_mov_b32_dpp v%d, v%d quad_perm:[1,0,3,2]" % (H+1, H) + DPP)
    a("v_cvt_pk_bf16_f32 v%d, v%d, v%d" % (vY, H, H+1)); a("v_mov_b32 v%d, v%d" % (vY+1, vY)); a("s_nop 1")
    a("v_permlane32_swap_b32 v%d, v%d" % (vY, vY+1))
    a.label("L_qpub")
    a("v_mov_b32 v%d, s%d" % (vY+2, sTAG)); a("v_mov_b32 v%d, s%d" % (vY+3, sTAGX))
    a("s_lshl_b32 s%d, s%d, 13" % (sT2, sXS)); a("s_add_u32 s%d, s%d, %d" % (sT2, sT2, WS_QP)); a("s_add_u32 s%d, s%d, 4096" % (sT3, sT2))
    a("s_lshl_b32 s%d, s%d, 8" % (sG0, sI)); a("s_add_u32 s%d, s%d, s%d" % (sG0, sG0, sT2))
    a("v_lshlrev_b32 v9, 3, v0")
    def qstore(f):
        a("s_mov_b64 exec, 0x55555555")
        a("buffer_store_dwordx4 %s, v9, %s, s%d offen %s" % (vr(vY, 4), srd(SRD_WS), sG0, f))
        a("s_mov_b64 exec, -1")
    qstore("")
    stamp(2)
    qloads = lambda f: ["buffer_load_dwordx4 %s, v12, %s, s%d offen offset:%d %s" % (vr(G+4*n, 4), srd(SRD_WS), sT2 if n < 4 else sT3, 1024*(n & 3), f) for n in range(8)]
    a("s_mov_b32 s%d, 0" % sMODE)
    a("s_mov_b32 s%d, %d" % (sCNT, 0 if forceslow else fastn))
    a.label("L_fh")
    for l in qloads(pollf): a(l)
    a("s_waitcnt vmcnt(0)")
    check([G+4*n+2 for n in range(8)], 13, [G+4*n+3 for n in range(8)])
    if not forceslow: a("s_cbranch_vccz L_fhok")
    a("s_sub_u32 s%d, s%d, 1" % (sCNT, sCNT)); a("s_cbranch_scc1 L_fhs")
    a("s_sleep %d" % sleep_bg); a("s_branch L_fh")
    a.label("L_fhs")
    a("s_mov_b32 s%d, 1" % sMODE)
    qstore("sc1")
    poll(qloads("sc1"), [G+4*n+2 for n in range(8)], 13, sleep_bg)
    a.label("L_fhok")
    a("v_lshlrev_b32 v9, 2, v0")
    for n in range(8):
        for b in range(2): a("ds_write_b32 v9, v%d offset:%d" % (G+4*n+b, L_QIMG + 2048*b + 256*n))
    a("s_lshl_b32 s%d, s%d, 1" % (sT1, sMODE)); a("s_xor_b32 s%d, s%d, 3" % (sT1, sT1)); a("v_mov_b32 v13, s%d" % sT1)
    a("ds_write_b32 v%d, v13 offset:%d" % (vCA, C_Q))
    stamp(3)
    def og_setup(p0):
        a("v_lshrrev_b32 v8, 4, v0"); a("v_and_b32 v9, 15, v0")
        a("v_lshlrev_b32 v16, 10, v8"); a("v_lshl_add_u32 v16, v9, 4, v16")
        for k in range(1, 8): a("v_add_u32 v%d, %d, v16" % (16+k, 4096*k))
        a("v_lshlrev_b32 v24, 2, v8")
        a("s_lshl_b32 s%d, s%d, 18" % (sT2, sXS)); a("s_lshl_b32 s%d, s%d, 8" % (sT1, sHP)); a("s_add_u32 s%d, s%d, s%d" % (sT2, sT2, sT1))
        a("s_add_u32 s%d, s%d, %d" % (sT2, sT2, WS_OP + 32768*p0))
        a("v_and_b32 v10, 7, v0"); a("v_lshlrev_b32 v10, 1, v10"); a("v_lshrrev_b32 v11, 3, v9"); a("v_add_u32 v10, v10, v11")
        a("v_and_b32 v11, 12, v10"); a("v_and_b32 v10, 3, v10"); a("v_lshl_add_u32 v10, v11, 1, v10")
        a("v_lshlrev_b32 v8, 3, v8")
        for par, tab in ((0, (0, 32, 4, 32)), (1, (36, 68, 64, 68))):
            a("s_mov_b32 s%d, 0x%x" % (sT0, sum(v << (8*r) for r, v in enumerate(tab))))
            a("v_lshrrev_b32 v11, v8, s%d" % sT0); a("v_and_b32 v11, 0xff, v11")
            a("v_add_lshl_u32 v%d, v10, v11, 1" % (25+par))
    WV = 40
    def og(f, phases):
        for p in phases:
            u = U()
            for k in range(8): a("ds_read_b32 v%d, v24 offset:%d" % (WV+k, L_WT + 128*p + 16*k))
            if p < 7 or not opre: lds_wait(vCA, 13, C_PART + 4*p, 4, 0 if p == 7 else 2)
            else: lds_wait(vCA, 13, C_PART + 4*p, opre, 0)
            if dbg and p in (5, 6): stamp({5: 1, 6: 5}[p])
            if p == 7: stamp(4)
            elif olag:
                a("s_cmp_eq_u32 s%d, %d" % (sCNT, maxspin*8)); a("s_cbranch_scc1 L_nl%d" % u)
                a("s_sleep %d" % olag); a.label("L_nl%d" % u)
            a("s_mov_b32 s%d, %d" % (sCNT, maxspin))
            ld = lambda k: a("buffer_load_dwordx4 %s, v%d, %s, s%d offen %s" % (vr(G+4*k, 4), 16+k, srd(SRD_WS), sT2, pollf if f else "sc1"))
            if omask & (1 if p == 7 else 2):
                for k in range(8): ld(k)
                a.label("L_og%d" % u)
                if stamps and p == 7:
                    a("s_mov_b64 s[%d:%d], s[%d:%d]" % (sST+4, sST+5, sST+2, sST+3)); stamp(1)
                a("s_mov_b64 s[%d:%d], 0" % (sM0, sM0+1))
                for k in range(8):
                    a("s_waitcnt vmcnt(7)")
                    a("v_cmp_ne_u32 vcc, s%d, v%d" % (sTAG, G+4*k+3))
                    a("s_wqm_b64 exec, vcc")
                    ld(k)
                    a("s_or_b64 s[%d:%d], s[%d:%d], exec" % (sM0, sM0+1, sM0, sM0+1))
                    a("s_mov_b64 exec, -1")
                a("s_cbranch_scc0 L_og%d_ok" % u)
                if p < 7: a("s_sleep %d" % osl)
                a("s_sub_u32 s%d, s%d, 1" % (sCNT, sCNT)); a("s_cbranch_scc0 L_og%d" % u)
                a.label("L_og%d_ok" % u)
                a("s_waitcnt vmcnt(0)")
                for r in range(3):
                    a("v_mul_f32 v%d, v%d, v%d" % (32+r, WV, G+r)); a("v_mul_f32 v%d, v%d, v%d" % (36+r, WV+4, G+16+r))
            else:
                a.label("L_og%d" % u)
                if p == 7 and stamps:
                    a("s_mov_b64 s[%d:%d], s[%d:%d]" % (sST+4, sST+5, sST+2, sST+3)); stamp(1); a("s_waitcnt lgkmcnt(0)")
                for k in range(8): ld(k)
                a("s_waitcnt vmcnt(0)")
                check([G+4*k+3 for k in range(8)], 13, pad=False)
                for r in range(3):
                    a("v_mul_f32 v%d, v%d, v%d" % (32+r, WV, G+r)); a("v_mul_f32 v%d, v%d, v%d" % (36+r, WV+4, G+16+r))
                a("s_cbranch_vccz L_og%d_ok" % u)
                if p < 7: a("s_sleep %d" % sleep_bg)
                a("s_sub_u32 s%d, s%d, 1" % (sCNT, sCNT)); a("s_cbranch_scc0 L_og%d" % u)
                a.label("L_og%d_ok" % u)
            if p == 7: stamp(6)
            if dbg and p == 5: stamp(2)
            if dbg and p == 6:
                stamp(3)
                a("s_sub_u32 s%d, %d, s%d" % (sST+14, maxspin, sCNT)); a("s_mul_i32 s%d, s%d, 100" % (sST+14, sST+14))
                a("s_add_u32 s%d, s%d, s%d" % (sST+14, sST+14, sST)); a("s_addc_u32 s%d, s%d, 0" % (sST+15, sST+1))
            for k in range(1, 4):
                for r in range(3):
                    a("v_fmac_f32 v%d, v%d, v%d" % (32+r, WV+k, G+4*k+r)); a("v_fmac_f32 v%d, v%d, v%d" % (36+r, WV+4+k, G+16+4*k+r))
            a("v_add_f32 v32, v32, v36"); a("v_add_f32 v33, v33, v37"); a("v_add_f32 v34, v34, v38"); a("v_add_f32 v35, v34, 0" if False else "v_mov_b32 v35, v34")
            a("s_nop 0")
            a("v_permlane32_swap_b32 v32, v33"); a("v_permlane32_swap_b32 v34, v35")
            a("v_add_f32 v32, v32, v33"); a("v_add_f32 v34, v34, v35"); a("s_nop 1")
            a("v_permlane16_swap_b32 v32, v34")
            a("v_add_f32 v32, v32, v34")
            a("v_cvt_pk_bf16_f32 v32, v32, v32")
            a("ds_write_b16 v%d, v32 offset:%d" % (25 + (p & 1), L_OIMG + 384*(p >> 2) + 192*((p & 3) >> 1)))
            if p < 7: a("s_add_u32 s%d, s%d, 32768" % (sT2, sT2))
    if CP:
        a("s_cmp_eq_u32 s%d, 0" % sMODE); a("s_cbranch_scc0 L_a0end")
        a("s_lshl_b32 s%d, s%d, 8" % (sT2, sXS)); a("s_add_u32 s%d, s%d, %d" % (sT2, sT2, WS_BRD))
        a("s_lshl_b32 s%d, s%d, 2" % (sT3, sI)); a("v_mov_b32 v5, s%d" % sT3)
        for k in range(len(CP)):
            lds_wait(vCA, 13, C_PROG, 4*(k+1), 2)
            a("s_add_u32 s%d, s%d, %d" % (sT0, sTAG, k+1)); a("v_mov_b32 v13, s%d" % sT0)
            a("s_mov_b64 exec, 1")
            a("buffer_store_dword v13, v5, %s, s%d offen" % (srd(SRD_WS), sT2))
            a("s_mov_b32 exec_lo, -1")
            a("buffer_load_dword v6, v9, %s, s%d offen %s" % (srd(SRD_WS), sT2, bflags))
            a("s_waitcnt vmcnt(0)")
            a("v_subrev_u32 v7, s%d, v6" % sT0); a("v_cmp_gt_u32 vcc, 64, v7")
            a("s_mov_b64 exec, -1"); a("s_nop 3")
            a("s_bcnt1_i32_b32 s%d, vcc_lo" % sT0)
            a("s_mov_b32 s%d, %d" % (sT1, WT[0][1]))
            for t, w_ in WT[1:]:
                a("s_cmp_ge_u32 s%d, %d" % (sT0, t + 1)); a("s_cselect_b32 s%d, %d, s%d" % (sT1, w_, sT1))
            a("v_mov_b32 v13, s%d" % sT1)
            a("ds_write_b32 v%d, v13 offset:%d" % (vCA, C_W))
        a.label("L_a0end")
    og_setup(7)
    lds_wait(vCA, 13, C_WT, 1, 4)
    by_mode(lambda f: og(f, [7]))
    a("s_waitcnt lgkmcnt(0)")
    stamp(7)
    a("s_barrier")
    end_wave()

    a.label("L_roles")
    a("s_cmp_eq_u32 s%d, 2" % sA); a("s_cbranch_scc1 L_a2")
    a("s_cmp_eq_u32 s%d, 3" % sA); a("s_cbranch_scc1 L_a3")
    get_mode(vCA, 13, 8)
    lds_wait(vCA, 13, C_ML, 4, 8)
    a("v_and_b32 v9, 31, v0"); a("v_lshlrev_b32 v9, 3, v9")
    a("ds_read_b64 v[20:21], v9 offset:%d" % L_MLL)
    a("s_lshl_b32 s%d, s%d, 12" % (sT2, sXS)); a("s_lshl_b32 s%d, s%d, 4" % (sT1, sI)); a("s_add_u32 s%d, s%d, s%d" % (sT2, sT2, sT1))
    a("s_add_u32 s%d, s%d, %d" % (sT2, sT2, WS_ML))
    a("v_lshlrev_b32 v9, 7, v0")
    a("s_waitcnt lgkmcnt(0)")
    a("v_max_f32_dpp v24, v20, v20 quad_perm:[1,0,3,2]" + DPP); a("s_nop 1")
    a("v_max_f32_dpp v24, v24, v24 quad_perm:[2,3,0,1]" + DPP)
    a("v_sub_f32 v22, v20, v24"); a("v_exp_f32 v22, v22"); a("s_nop 0")
    a("v_mul_f32 v25, v21, v22"); a("s_nop 1")
    a("v_add_f32_dpp v25, v25, v25 quad_perm:[1,0,3,2]" + DPP); a("s_nop 1")
    a("v_add_f32_dpp v25, v25, v25 quad_perm:[2,3,0,1]" + DPP)
    a("v_mov_b32 v26, s%d" % sTAG); a("v_mov_b32 v27, s%d" % sTAG)
    a("s_mov_b64 exec, 0x11111111")
    by_mode(lambda f: a("buffer_store_dwordx4 v[24:27], v9, %s, s%d offen %s" % (srd(SRD_WS), sT2, "" if f else "sc1")))
    a("s_mov_b64 exec, -1")
    stamp(3)
    a("s_lshl_b32 s%d, s%d, 18" % (sT2, sXS)); a("s_lshl_b32 s%d, s%d, 10" % (sT1, sI)); a("s_add_u32 s%d, s%d, s%d" % (sT2, sT2, sT1))
    a("s_add_u32 s%d, s%d, %d" % (sT2, sT2, WS_OP))
    a("v_mov_b32 v30, v22")
    a("s_mov_b32 s%d, 4" % sT3)
    mfma_setup(sT3, vT)
    def comb(f):
        for p in range(8):
            O = G + 16 + 4*(p & 1)
            for w in range(4): a("v_readlane_b32 s%d, v30, %d" % (sWG+w, 4*p+w))
            a("v_mov_b32 v%d, s%d" % (O+3, sTAG))
            lds_wait(vCA, 13, C_PART + 4*p, 4, 4 if p < 7 else 0)
            if p == 7: stamp(4)
            for w in range(4): a("ds_read_b128 %s, v12 offset:%d" % (vr(G+4*w, 4), L_PART + 4096*p + 1024*w))
            for w in range(4):
                a("s_waitcnt lgkmcnt(%d)" % (3-w))
                for r in range(3):
                    a(("v_mul_f32" if w == 0 else "v_fmac_f32") + " v%d, s%d, v%d" % (O+r, sWG+w, G+4*w+r))
            a("buffer_store_dwordx4 %s, v12, %s, s%d offen %s" % (vr(O, 4), srd(SRD_WS), sT2, "" if f else "sc1"))
            if p < 7: a("s_add_u32 s%d, s%d, 32768" % (sT2, sT2))
            if f and (p + 1) in pw:
                a("buffer_store_dwordx4 v[32:35], v12, %s, s%d offen" % (srd(SRD_WS), sT2))
    a("s_not_b32 s%d, s%d" % (sT0, sTAG))
    for k in range(4): a("v_mov_b32 v%d, s%d" % (32+k, sT0))
    by_mode(comb)
    stamp(2)
    a("s_branch L_mfma")

    a.label("L_a2")
    def all32(op, v, t):
        for n in (1, 2, 4, 8):
            a("s_nop 1"); a("%s_dpp v%d, v%d, v%d row_ror:%d" % (op, v, v, v, n) + DPP)
        a("v_mov_b32 v%d, v%d" % (t, v)); a("s_nop 1"); a("v_permlane16_swap_b32 v%d, v%d" % (t, v)); a("s_nop 1")
        a("%s v%d, v%d, v%d" % (op, v, v, t))
    get_mode(vCA, 13, 8)
    lds_wait(vCA, 13, C_ML, 4, 8)
    a("s_sleep %d" % (olag + 8))
    a("s_lshl_b32 s%d, s%d, 12" % (sT3, sXS)); a("s_add_u32 s%d, s%d, %d" % (sT3, sT3, WS_ML))
    by_mode(lambda f: poll(["buffer_load_dwordx4 %s, v12, %s, s%d offen offset:%d %s" % (vr(G+4*n, 4), srd(SRD_WS), sT3, 1024*n, pollf if f else "sc1") for n in range(4)],
                           [G+4*n+k for n in range(4) for k in (2, 3)], 13, sleep_bg))
    a("v_lshlrev_b32 v9, 2, v0")
    for n in range(4):
        M, Lr = G+4*n, G+4*n+1
        a("v_mov_b32 v36, v%d" % M); all32("v_max_f32", 36, 37)
        a("v_sub_f32 v%d, v%d, v36" % (M, M)); a("v_exp_f32 v%d, v%d" % (M, M)); a("s_nop 0")
        a("v_mul_f32 v%d, v%d, v%d" % (Lr, Lr, M)); all32("v_add_f32", Lr, 37)
        a("v_rcp_f32 v%d, v%d" % (Lr, Lr)); a("s_nop 0"); a("v_mul_f32 v%d, v%d, v%d" % (M, M, Lr))
        a("ds_write_b32 v9, v%d offset:%d" % (M, L_WT + 256*n))
    a("ds_write_b32 v%d, v%d offset:%d" % (vCA, vONE, C_WT))
    stamp(3)
    og_setup(0)
    by_mode(lambda f: og(f, range(7)))
    a("s_waitcnt lgkmcnt(0)")
    if not dbg: stamp(7)
    a("s_barrier")
    if not dbg: stamp(5)
    end_wave()

    a.label("L_a3")
    mk_srd(SRD_C, sW2, 1966080)
    a("v_mul_u32_u24 v6, 205, v0"); a("v_lshrrev_b32 v6, 11, v6")
    a("v_mul_u32_u24 v7, 10, v6"); a("v_sub_u32 v7, v0, v7")
    a("v_mul_u32_u24 v6, 1280, v6"); a("v_lshl_add_u32 v6, v7, 4, v6")
    a("s_lshl2_add_u32 s%d, s%d, s%d" % (sT0, sXS, sHP)); a("s_mul_i32 s%d, s%d, 61440" % (sT0, sT0))
    a("s_mul_i32 s%d, s%d, 160" % (sK1, sJ)); a("s_add_u32 s%d, s%d, s%d" % (sT0, sT0, sK1))
    a("s_mov_b32 exec_hi, 0x0fffffff")
    for n in range(8):
        if n >= W2D: a("s_waitcnt vmcnt(%d)" % (W2D-1))
        a("s_mov_b32 m0, %d" % (L_W2 + 960*n))
        if n: a("s_add_u32 s%d, s%d, 7680" % (sT0, sT0))
        else: a("s_nop 0")
        a("buffer_load_dwordx4 v6, %s, s%d offen nt lds" % (srd(SRD_C), sT0))
    a("s_mov_b64 exec, -1")
    NC = 80 // YC
    sMI = sHB
    a("s_lshl3_add_u32 s%d, s%d, s%d" % (sMI, sHP, sXS))
    if crit != 3:
        pass
    mk_srd(SRD_A, sGW, 1280)
    a("v_lshlrev_b32 v7, 2, v0")
    a("s_cmp_lt_u32 s%d, %d" % (sMI, NC)); a("s_cbranch_scc0 L_nogl")
    for i in range(5):
        a("buffer_load_dword v%d, v7, %s, 0 offen offset:%d" % (24+i, srd(SRD_B), 256*i))
        a("buffer_load_dword v%d, v7, %s, 0 offen offset:%d" % (29+i, srd(SRD_B), 1280+256*i))
        a("buffer_load_dword v%d, v7, %s, 0 offen offset:%d" % (34+i, srd(SRD_A), 256*i))
    a.label("L_nogl")
    a("v_lshrrev_b32 v8, 2, v0"); a("v_mul_u32_u24 v8, 160, v8"); a("v_and_b32 v9, 3, v0"); a("v_lshl_add_u32 v8, v9, 3, v8")
    a("v_and_b32 v9, 1, v0"); a("v_lshlrev_b32 v9, 11, v9"); a("v_lshrrev_b32 v10, 4, v0"); a("v_lshl_add_u32 v9, v10, 3, v9")
    a("s_mul_i32 s%d, s%d, 96" % (sT0, sHP)); a("v_add_u32 v9, s%d, v9" % sT0)
    get_mode(vCA, 13, 8)
    a("s_waitcnt vmcnt(0)")
    MA, MB, MD = 48, 56, 128
    for t in range(3): a("ds_read_b64 %s, v9 offset:%d" % (vr(MA+2*t, 2), L_QIMG + 1536 + 32*t))
    for ct in range(5):
        for t in range(3): a("ds_read_b64_tr_b16 %s, v8 offset:%d" % (vr(MB+2*t, 2), L_W2 + 32*ct + 2560*t))
        a("s_waitcnt lgkmcnt(0)")
        for t in range(3):
            a("v_mfma_f32_16x16x16_bf16 %s, %s, %s, %s" % (vr(MD+4*ct, 4), vr(MA+2*t, 2), vr(MB+2*t, 2), "0" if t == 0 else vr(MD+4*ct, 4)))
        a("s_nop 3")
    sTA, sTB = sG0, sG1
    a("s_and_b32 s%d, s%d, 0xff" % (sTA, sTAG)); a("s_bfe_u32 s%d, s%d, 0x80008" % (sTB, sTAG))
    a("s_mov_b32 s%d, 0xffffff00" % sT0)
    a("v_mov_b32 v4, s%d" % sTA); a("v_mov_b32 v5, s%d" % sTB); a("v_lshlrev_b32 v9, 3, v0")
    a("s_nop 3")
    a("s_mov_b64 exec, 0xffff")
    for ct in range(5):
        for k in range(2):
            a("v_add_u32 v%d, 0x80, v%d" % (MD+4*ct+k, MD+4*ct+k))
            a("v_and_or_b32 v%d, v%d, s%d, v%d" % (MD+4*ct+k, MD+4*ct+k, sT0, 4+k))
        a("ds_write_b64 v9, %s offset:%d" % (vr(MD+4*ct, 2), L_YB+128*ct))
    a("s_mov_b64 exec, -1")
    stamp(3)
    a("s_cmp_lt_u32 s%d, %d" % (sMI, NC)); a("s_cbranch_scc0 L_nogate")
    a("v_mov_b32 v40, 0"); a("v_mov_b32 v41, 0")
    for i in range(5):
        a("v_lshlrev_b32 v43, 16, v%d" % (34+i)); a("v_and_b32 v44, 0xffff0000, v%d" % (34+i))
        for b in range(2):
            xr = 24+5*b+i
            a("v_lshlrev_b32 v45, 16, v%d" % xr); a("v_and_b32 v46, 0xffff0000, v%d" % xr)
            a("v_mul_f32 v45, v45, v43"); a("v_mul_f32 v46, v46, v44")
            rnd(45); rnd(46)
            a("v_add_f32 v%d, v%d, v45" % (40+b, 40+b)); a("v_add_f32 v%d, v%d, v46" % (40+b, 40+b))
    a("s_nop 1")
    a("v_permlane32_swap_b32 v40, v41"); a("s_nop 1"); a("v_add_f32 v40, v40, v41")
    all32("v_add_f32", 40, 41)
    rnd(40)
    a("v_mul_f32 v40, 0xbfb8aa3b, v40"); a("v_exp_f32 v40, v40"); a("s_nop 0")
    a("v_add_f32 v40, 1.0, v40"); a("v_rcp_f32 v40, v40"); a("s_nop 0"); rnd(40)
    a("v_sub_f32 v41, 1.0, v40"); rnd(41)
    a("s_mov_b32 s%d, 0xffff0000" % sM1); a("s_mov_b32 s%d, 0xffff0000" % (sM1+1))
    a("v_cndmask_b32 v42, v40, v41, s[%d:%d]" % (sM1, sM1+1))
    a.label("L_nogate")
    ly = YC.bit_length() - 1; lw = WSEG.bit_length() - 1; NL = YC // 2
    sYC, sOA = sHB+1, sHB+2
    a("s_lshl_b32 s%d, s%d, %d" % (sT1, sMI, ly))
    a("s_lshr_b32 s%d, s%d, %d" % (sT0, sT1, lw)); a("s_lshl_b32 s%d, s%d, %d" % (sT0, sT0, 9+lw))
    a("s_and_b32 s%d, s%d, %d" % (sT2, sT1, WSEG-1)); a("s_lshl_b32 s%d, s%d, 4" % (sT2, sT2)); a("s_add_u32 s%d, s%d, s%d" % (sT0, sT0, sT2))
    a("s_mul_i32 s%d, s%d, 40960" % (sT2, sJ)); a("s_add_u32 s%d, s%d, s%d" % (sT0, sT0, sT2)); a("s_add_u32 s%d, s%d, %d" % (sYC, sT0, WS_YA))
    VP = 48
    a("v_lshrrev_b32 v%d, %d, v0" % (VP, ly)); a("v_lshlrev_b32 v%d, %d, v%d" % (VP, 4+lw, VP)); a("v_and_b32 v9, %d, v0" % (YC-1))
    a("v_lshl_add_u32 v%d, v9, 4, v%d" % (VP, VP))
    for i in range(1, NL): a("v_add_u32 v%d, %d, v%d" % (VP+i, (64//YC)*WSEG*16*i, VP))
    a("v_lshrrev_b32 v8, 5, v0"); a("v_mul_u32_u24 v8, 1280, v8"); a("v_lshl_add_u32 v8, v9, 1, v8")
    a("s_lshl1_add_u32 s%d, s%d, s%d" % (sOA, sT1, sK1))
    a("v_mov_b32 v43, 0xffffff00")
    mk_srd(SRD_A, sOUT, 2560)
    mk_srd(SRD_C, sWO, 7864320)
    a("v_mul_u32_u24 v10, 205, v0"); a("v_lshrrev_b32 v10, 12, v10")
    a("v_mul_u32_u24 v10, 7680, v10"); a("v_add_u32 v6, v6, v10")
    a("s_mul_i32 s%d, s%d, 2560" % (sT3, sHP)); a("s_add_u32 s%d, s%d, s%d" % (sT3, sT3, sK1))
    a("s_mov_b32 exec_hi, 0x0fffffff")
    for n in range(32):
        if n % 8 == 0:
            head_of(sT2, t=n // 8); a("s_mul_i32 s%d, s%d, 245760" % (sT2, sT2)); a("s_add_u32 s%d, s%d, s%d" % (sT2, sT2, sT3))
        else: a("s_add_u32 s%d, s%d, 30720" % (sT2, sT2))
        if n == wo_early:
            a("s_mov_b64 exec, -1"); lds_wait(vCA, 13, C_TRIG, 4, 2); a("s_mov_b32 exec_hi, 0x0fffffff")
        if n == wo_cut:
            a("s_mov_b64 exec, -1"); lds_wait(vCA, 13, C_PART + 28, 4, 0); a("s_sleep 2"); a("s_mov_b32 exec_hi, 0x0fffffff")
        dp = WOE if n < wo_early else (WOD1 if n < wo_cut else WOD2)
        if n - (0 if n < wo_early else wo_early) >= dp: a("s_waitcnt vmcnt(%d)" % (dp-1))
        a("s_mov_b32 m0, %d" % (L_WO + 960*n)); a("s_nop 0")
        a("buffer_load_dwordx4 v6, %s, s%d offen nt lds" % (srd(SRD_C), sT2))
    a("s_mov_b64 exec, -1")
    a("s_waitcnt vmcnt(0) lgkmcnt(0)")
    a("ds_write_b32 v%d, v%d offset:%d" % (vCA, vONE, C_WO))
    stamp(4)
    a("s_mov_b32 s%d, %d" % (sCNT, maxspin))
    a("s_cmp_lt_u32 s%d, %d" % (sMI, NC))
    a("s_barrier")
    a("s_cbranch_scc1 L_cons")
    end_wave()
    a.label("L_cons")
    if ydelay: a("s_sleep %d" % ydelay)
    stamp(5)
    PS = G + 8
    def yissue(k):
        if stamps and k == 0:
            a("s_mov_b64 s[%d:%d], s[%d:%d]" % (sST+4, sST+5, sST+2, sST+3)); stamp(1); a("s_waitcnt lgkmcnt(0)")
        for i in range(NL):
            a("buffer_load_dwordx4 %s, v%d, %s, s%d offen sc1" % (vr(PS+4*NL*k+4*i, 4), VP+i, srd(SRD_WS), sYC))
    for k in range(ysets-1):
        yissue(k)
        if ygap: a("s_sleep %d" % ygap)
    a.label("L_yp")
    for k in range(ysets):
        yissue((k + ysets - 1) % ysets)
        a("s_waitcnt vmcnt(%d)" % (NL*(ysets-1)))
        R = PS + 4*NL*k
        a("v_xor_b32 v14, s%d, v%d" % (sTA, R+2))
        for i in range(1, NL): a("v_bitop3_b32 v14, v%d, s%d, v14 bitop3:0xbe" % (R+4*i+2, sTA))
        for i in range(NL): a("v_bitop3_b32 v14, v%d, s%d, v14 bitop3:0xbe" % (R+4*i+3, sTB))
        a("v_and_b32 v14, 0xff, v14")
        a("v_cmp_ne_u32 vcc, 0, v14")
        for i in range(NL):
            for r in (2, 3): a("v_and_b32 v%d, v43, v%d" % (R+4*i+r, R+4*i+r))
        n = NL
        while n > 2:
            n //= 2
            for i in range(n):
                for r in range(4): a("v_add_f32 v%d, v%d, v%d" % (R+4*i+r, R+4*i+r, R+4*(i+n)+r))
        for r in range(4): a("v_add_f32 v%d, v%d, v%d" % (G+r, R+r, R+4+r))
        a("s_cbranch_vccz L_ypok")
    a("s_sub_u32 s%d, s%d, 1" % (sCNT, sCNT)); a("s_cbranch_scc0 L_yp")
    a.label("L_ypok")
    stamp(6)
    a("s_nop 0")
    for Y in (G, G+2): a("v_permlane32_swap_b32 v%d, v%d" % (Y, Y+1))
    a("s_nop 0")
    for Y in (G, G+2): a("v_add_f32 v%d, v%d, v%d" % (Y, Y, Y+1))
    a("s_nop 1")
    a("v_permlane16_swap_b32 v%d, v%d" % (G, G+2)); a("s_nop 1")
    a("v_add_f32 v%d, v%d, v%d" % (G, G, G+2))
    for n in (4, 8):
        if n >= YC: a("s_nop 1"); a("v_add_f32_dpp v%d, v%d, v%d row_ror:%d" % (G, G, G, n) + DPP)
    rnd(G)
    a("v_mul_f32 v%d, v42, v%d" % (G, G)); rnd(G)
    a("v_mov_b32 v%d, v%d" % (G+1, G)); a("s_nop 1")
    a("v_permlane16_swap_b32 v%d, v%d" % (G+1, G)); a("s_nop 1")
    a("v_add_f32 v%d, v%d, v%d" % (G, G, G+1))
    a("v_cvt_pk_bf16_f32 v%d, v%d, v%d" % (G, G, G))
    a("s_mov_b32 exec_lo, %d" % ((1 << YC)-1)); a("s_mov_b32 exec_hi, %d" % ((1 << YC)-1))
    a("buffer_store_short v%d, v8, %s, s%d offen" % (G, srd(SRD_A), sOA))
    a("s_or_b32 s%d, s%d, s%d" % (sT1, sMI, sJ)); a("s_cbranch_scc1 L_noep")
    a("s_mov_b64 exec, 1")
    a("v_mov_b32 v2, 0"); a("v_mov_b32 v3, s%d" % sTAG)
    a("buffer_store_dword v3, v2, %s, 0 offen sc1" % srd(SRD_WS))
    if diag_fix:
        a("s_add_u32 s98, s98, %d" % diag_fix)
        a.label("L_diag")
        a("s_memrealtime s[96:97]"); a("s_waitcnt lgkmcnt(0)")
        a("s_sub_u32 s96, s96, s98"); a("s_cmp_lt_i32 s96, 0"); a("s_cbranch_scc1 L_diag")
    a.label("L_noep")
    stamp(7)
    dump_stamps()
    a.label("L_end")
    a("s_endpgm")
    a.raw('.section .rodata,"a"'); a.raw(".p2align 6"); a.raw(".amdhsa_kernel %s_kernel" % KN)
    for l in ["next_free_vgpr 256", "next_free_sgpr 100", "accum_offset 256", "group_segment_fixed_size 0", "kernarg_size 104",
              "user_sgpr_count 2", "user_sgpr_kernarg_segment_ptr 1", "system_sgpr_workgroup_id_x 1", "float_denorm_mode_32 3"]:
        a.raw("  .amdhsa_" + l)
    a.raw(".end_amdhsa_kernel")
    return "\n".join(a.L) + "\n"

if __name__ == "__main__":
    cfgs = json.load(open(sys.argv[1])) if len(sys.argv) > 1 else {"k4": {}}
    for n, c in cfgs.items():
        open(n + ".s", "w").write(gen(**c))
    print(" ".join(n + ".s" for n in cfgs))
```
